```python
import torch

def _softmax(x, axis=-1):
    return torch.softmax(x, dim=axis)
def _gelu(x):
    return torch.nn.functional.gelu(x, approximate="tanh")
def _silu(x):
    return torch.nn.functional.silu(x)
def _sigmoid(x):
    return torch.sigmoid(x)
def _layernorm(x, axis=-1, eps=1e-5):
    m = x.mean(dim=axis, keepdim=True)
    v = x.var(dim=axis, keepdim=True, unbiased=False)
    return (x - m) / torch.sqrt(v + eps)
def _scatter_add(tgt, idx, src, axis=0):
    return tgt.clone().index_add_(axis, idx, src)
def _segment_sum(src, seg, n):
    out = torch.zeros((n,) + src.shape[1:], dtype=src.dtype)
    return out.index_add_(0, seg, src)
def _pad(x, pw):
    flat = tuple(v for pair in reversed(pw) for v in pair)
    return torch.nn.functional.pad(x, flat)

kernel_name = 'sequential_preLN__linear_kernel_hedgehog__swiglu_ffn__prompt'

def setup_inputs():

    _w = (lambda a: (lambda t: t.to(torch.bfloat16) if t.is_floating_point() else t)(torch.as_tensor(a)))
    def _A_setup():
        B, S, D, H = 1, 2048, 512, 32
        Dh = D // H
        return {
            "x": _w((lambda *s: torch.randn(*s, dtype=torch.bfloat16) * 0.05)(B, S, D)),
            "wqkv": _w((lambda *s: torch.randn(*s, dtype=torch.bfloat16) * 0.2)(D, 3 * D)),
            "w_phi": _w((lambda *s: torch.randn(*s, dtype=torch.bfloat16) * 0.2)(H, Dh, Dh) * (Dh ** -0.5)),
            "wo": _w((lambda *s: torch.randn(*s, dtype=torch.bfloat16) * 0.05)(D, D)),
        }
    _A_in = _A_setup()

    def _B_setup():
        B, S, D, F = 1, 2048, 512, 1792
        return {
            "x": _w((lambda *s: torch.randn(*s, dtype=torch.bfloat16) * 0.05)(B, S, D)),
            "w_gate": _w((lambda *s: torch.randn(*s, dtype=torch.bfloat16) * 0.05)(D, F)),
            "w_up": _w((lambda *s: torch.randn(*s, dtype=torch.bfloat16) * 0.05)(D, F)),
            "w_down": _w((lambda *s: torch.randn(*s, dtype=torch.bfloat16) * 0.05)(F, D)),
        }
    _B_in = _B_setup()

    return {
        "A_x": _A_in["x"],
        "A_wqkv": _A_in["wqkv"],
        "A_w_phi": _A_in["w_phi"],
        "A_wo": _A_in["wo"],
        "B_x": _B_in["x"],
        "B_w_gate": _B_in["w_gate"],
        "B_w_up": _B_in["w_up"],
        "B_w_down": _B_in["w_down"],
    }

def reference(A_x, A_wqkv, A_w_phi, A_wo, B_x, B_w_gate, B_w_up, B_w_down):
    def _A_ref(x, wqkv, w_phi, wo):
        B, S, D = x.shape
        H = 32; Dh = D // H
        qkv = (lambda x, *d: x.permute(*d))((x @ wqkv).reshape(B, S, 3, H, Dh), 2, 0, 3, 1, 4)
        q, k, v = qkv[0], qkv[1], qkv[2]
        pq = torch.einsum("bhsd,hdf->bhsf", q, w_phi)
        pk = torch.einsum("bhsd,hdf->bhsf", k, w_phi)
        phi_q = torch.concatenate([_softmax(pq, axis=-1), _softmax(-pq, axis=-1)], axis=-1)
        phi_k = torch.concatenate([_softmax(pk, axis=-1), _softmax(-pk, axis=-1)], axis=-1)
        kv = torch.einsum("bhsf,bhsd->bhfd", phi_k, v)
        z  = torch.einsum("bhsf->bhf", phi_k)
        num = torch.einsum("bhqf,bhfd->bhqd", phi_q, kv)
        den = torch.einsum("bhqf,bhf->bhq", phi_q, z)[..., None] + 1e-6
        o = num / den
        return (lambda x, *d: x.permute(*d))(o, 0, 2, 1, 3).reshape(B, S, D) @ wo

    def _B_ref(x, w_gate, w_up, w_down):
        g = _silu(x @ w_gate)
        u = x @ w_up
        return (g * u) @ w_down

    x = A_x
    h = x + _A_ref(_layernorm(x, axis=-1), A_wqkv, A_w_phi, A_wo)
    h2 = h + _B_ref(_layernorm(h, axis=-1), B_w_gate, B_w_up, B_w_down)
    return h2
```

```python
TRANS = {'v_exp_f32', 'v_log_f32', 'v_rcp_f32', 'v_rsq_f32', 'v_sqrt_f32', 'v_sin_f32', 'v_cos_f32'}


class R:
    __slots__ = ('k', 'i', 'n')

    def __init__(self, k, i, n=1):
        self.k, self.i, self.n = k, i, n

    def __str__(self):
        if self.n == 1:
            return f'{self.k}{self.i}'
        return f'{self.k}[{self.i}:{self.i + self.n - 1}]'

    def regs(self):
        return [(self.k, self.i + j) for j in range(self.n)]

    def __getitem__(self, j):
        assert 0 <= j < self.n
        return R(self.k, self.i + j, 1)

    def sub(self, j, n):
        assert 0 <= j and j + n <= self.n
        return R(self.k, self.i + j, n)


def v(i, n=1):
    return R('v', i, n)


def a(i, n=1):
    return R('a', i, n)


def s(i, n=1):
    return R('s', i, n)


def _regs(x):
    return x.regs() if isinstance(x, R) else []


class Kern:
    def __init__(self, name):
        self.name = name
        self.lines = []
        self.pos = 0
        self.vwrite = {}
        self.twrite = {}
        self.mfma_d = {}
        self.mfma_c = {}
        self.wstore = {}
        self.sg_valu = {}
        self.m0w = -100
        self.vmq = []
        self.lgq = []
        self.maxv = 0
        self.maxa = -1
        self.maxs = 0
        self.count = {}

    def raw(self, text):
        self.lines.append(text)

    def comment(self, text):
        self.lines.append('    ; ' + text)

    def _emit(self, text):
        self.lines.append('    ' + text)
        mn = text.split()[0]
        self.count[mn] = self.count.get(mn, 0) + 1
        self.pos += 1

    def nop(self, states):
        while states > 0:
            n = min(states, 16)
            self.lines.append(f'    s_nop {n - 1}')
            self.count['s_nop'] = self.count.get('s_nop', 0) + 1
            self.pos += n
            states -= n

    def _need(self, p, w):
        if p is None:
            return
        short = (p + 1 + w) - self.pos
        if short > 0:
            self.nop(short)

    def _track(self, regs):
        for k, i in regs:
            if k == 'v':
                self.maxv = max(self.maxv, i)
            elif k == 'a':
                self.maxa = max(self.maxa, i)
            elif k == 's':
                self.maxs = max(self.maxs, i)

    def _wait_regs(self, regs):
        regs = set(regs)
        nv = None
        for idx, e in enumerate(self.vmq):
            if e['regs'] & regs:
                n = len(self.vmq) - 1 - idx
                nv = n if nv is None else min(nv, n)
        nl = None
        for idx, e in enumerate(self.lgq):
            if e['regs'] & regs:
                n = len(self.lgq) - 1 - idx
                nl = n if nl is None else min(nl, n)
        self._do_wait(nv, nl)

    def _do_wait(self, nv, nl):
        parts = []
        if nv is not None:
            nv = min(nv, 63)
            if nv < len(self.vmq):
                parts.append(f'vmcnt({nv})')
                self.vmq = self.vmq[len(self.vmq) - nv:] if nv > 0 else []
        if nl is not None:
            nl = min(nl, 15)
            if nl < len(self.lgq):
                parts.append(f'lgkmcnt({nl})')
                self.lgq = self.lgq[len(self.lgq) - nl:] if nl > 0 else []
        if parts:
            self._emit('s_waitcnt ' + ' '.join(parts))

    def wait_tag(self, tag):
        last = None
        for idx, e in enumerate(self.vmq):
            if e['tag'] == tag:
                last = idx
        if last is not None:
            self._do_wait(len(self.vmq) - 1 - last, None)

    def wait_vm(self, n=0):
        self._do_wait(n, None)

    def wait_lgkm(self, n=0):
        self._do_wait(None, n)

    def wait_smem(self):
        self._emit('s_waitcnt lgkmcnt(0)')
        self.lgq = []

    def wait_all(self):
        self._do_wait(0, 0)

    def barrier(self):
        self._emit('s_barrier')

    def _haz_valu(self, mn, wr, rd, srd):
        istrans = mn in TRANS
        isperm = mn.startswith('v_permlane')
        isrl = mn.startswith('v_readlane') or mn.startswith('v_readfirstlane')
        isdpp = mn.endswith('_dpp')
        for r in rd:
            if r in self.mfma_d:
                self._need(self.mfma_d[r][0], self.mfma_d[r][3])
            if not istrans and r in self.twrite:
                self._need(self.twrite[r], 1)
            if r in self.vwrite:
                if isperm or isdpp:
                    self._need(self.vwrite[r], 2)
                elif isrl:
                    self._need(self.vwrite[r], 1)
        for r in wr:
            if r in self.mfma_d:
                self._need(self.mfma_d[r][0], self.mfma_d[r][3])
            if r in self.mfma_c:
                self._need(self.mfma_c[r], 7)
            if r in self.wstore:
                self._need(self.wstore[r], 2)
        for r in srd:
            if r in self.sg_valu:
                self._need(self.sg_valu[r], 2)

    def valu(self, mn, dst, *src, mods=''):
        dsts = dst if isinstance(dst, (list, tuple)) else [dst]
        wr, swr = [], []
        for d in dsts:
            if isinstance(d, R):
                if d.k == 's':
                    swr += d.regs()
                else:
                    wr += d.regs()
        rd, srd = [], []
        for x in src:
            if isinstance(x, R):
                if x.k == 's':
                    srd += x.regs()
                else:
                    rd += x.regs()
        rmw = mn in ('v_fmac_f32', 'v_pk_fmac_f16') or mn.startswith('v_permlane')
        if rmw:
            rd += wr
        if mn.startswith('v_permlane'):
            wr = wr + [r for x in src if isinstance(x, R) for r in x.regs()]
        self._wait_regs(rd + wr)
        self._haz_valu(mn, wr, rd, srd)
        ops = ', '.join(str(x) for x in list(dsts) + list(src))
        self._emit(f'{mn} {ops}{(" " + mods) if mods else ""}')
        p = self.pos - 1
        for r in wr:
            self.vwrite[r] = p
            if mn in TRANS:
                self.twrite[r] = p
            else:
                self.twrite.pop(r, None)
            self.mfma_d.pop(r, None)
        for r in swr:
            self.sg_valu[r] = p
        self._track(wr + rd + srd + swr)

    def mfma(self, d, A, B, c, shape='32x32x16'):
        passes_w = 12 if shape == '32x32x16' else 8
        ov_w = 10 if shape == '32x32x16' else 6
        rdab = A.regs() + B.regs()
        rdc = _regs(c)
        self._wait_regs(rdab + rdc + d.regs())
        for r in rdab + rdc:
            if r in self.vwrite:
                self._need(self.vwrite[r], 2)
        for r in rdab:
            if r in self.mfma_d:
                self._need(self.mfma_d[r][0], self.mfma_d[r][3])
        if isinstance(c, R):
            for r in rdc:
                if r in self.mfma_d:
                    p, st, n, _ = self.mfma_d[r]
                    if (st, n) == (c.i, c.n) and r[0] == c.k:
                        pass
                    else:
                        self._need(p, ov_w)
        self._emit(f'v_mfma_f32_{shape}_bf16 {d}, {A}, {B}, {c}')
        p = self.pos - 1
        for r in d.regs():
            self.mfma_d[r] = (p, d.i, d.n, passes_w)
            self.vwrite.pop(r, None)
            self.twrite.pop(r, None)
        for r in rdc:
            self.mfma_c[r] = p
        self._track(rdab + rdc + d.regs())

    def _haz_mem(self, regs, sregs=()):
        for r in regs:
            if r in self.mfma_d:
                self._need(self.mfma_d[r][0], self.mfma_d[r][3])
        for r in sregs:
            if r in self.sg_valu:
                self._need(self.sg_valu[r], 5)

    def bload(self, dst, voff, srd, soff=0, offset=0, tag=None, mods=''):
        n = dst.n
        mn = {1: 'buffer_load_dword', 2: 'buffer_load_dwordx2', 3: 'buffer_load_dwordx3', 4: 'buffer_load_dwordx4'}[n]
        self._wait_regs(dst.regs() + voff.regs())
        self._haz_mem(dst.regs() + voff.regs(), srd.regs() + _regs(soff))
        off = f' offset:{offset}' if offset else ''
        self._emit(f'{mn} {dst}, {voff}, {srd}, {soff} offen{off}{(" " + mods) if mods else ""}')
        self.vmq.append(dict(regs=set(dst.regs()), tag=tag))
        for r in dst.regs():
            self.vwrite.pop(r, None)
            self.twrite.pop(r, None)
            self.mfma_d.pop(r, None)
        self._track(dst.regs() + voff.regs() + srd.regs() + _regs(soff))

    def bstore(self, src, voff, srd, soff=0, offset=0, tag=None, mods=''):
        n = src.n
        mn = {1: 'buffer_store_dword', 2: 'buffer_store_dwordx2', 3: 'buffer_store_dwordx3', 4: 'buffer_store_dwordx4'}[n]
        self._wait_regs(src.regs() + voff.regs())
        self._haz_mem(src.regs() + voff.regs(), srd.regs() + _regs(soff))
        off = f' offset:{offset}' if offset else ''
        self._emit(f'{mn} {src}, {voff}, {srd}, {soff} offen{off}{(" " + mods) if mods else ""}')
        p = self.pos - 1
        if n >= 3:
            for r in src.regs():
                self.wstore[r] = p
        self.vmq.append(dict(regs=set(), tag=tag))
        self._track(src.regs() + voff.regs() + srd.regs() + _regs(soff))

    def batomic_add_f32(self, src, voff, srd, soff=0, offset=0, tag=None):
        self._wait_regs(src.regs() + voff.regs())
        self._haz_mem(src.regs() + voff.regs(), srd.regs() + _regs(soff))
        off = f' offset:{offset}' if offset else ''
        self._emit(f'buffer_atomic_add_f32 {src}, {voff}, {srd}, {soff} offen{off}')
        self.vmq.append(dict(regs=set(), tag=tag))
        self._track(src.regs() + voff.regs() + srd.regs() + _regs(soff))

    def set_m0(self, val):
        self._emit(f's_mov_b32 m0, {val}')
        self.m0w = self.pos - 1
        if isinstance(val, R):
            self._track(val.regs())

    def dma(self, voff, srd, soff, tag=None, offset=0):
        self._wait_regs(voff.regs())
        self._haz_mem(voff.regs(), srd.regs() + _regs(soff))
        self._need(self.m0w, 1)
        off = f' offset:{offset}' if offset else ''
        self._emit(f'buffer_load_dwordx4 {voff}, {srd}, {soff} offen{off} lds')
        self.vmq.append(dict(regs=set(), tag=tag))
        self._track(voff.regs() + srd.regs() + _regs(soff))

    def ds_read(self, dst, addr, offset=0, tr=False):
        n = dst.n
        if tr:
            assert n == 2
            mn = 'ds_read_b64_tr_b16'
        else:
            mn = {1: 'ds_read_b32', 2: 'ds_read_b64', 4: 'ds_read_b128'}[n]
        assert 0 <= offset < 65536, offset
        self._wait_regs(dst.regs() + addr.regs())
        self._haz_mem(dst.regs() + addr.regs())
        off = f' offset:{offset}' if offset else ''
        self._emit(f'{mn} {dst}, {addr}{off}')
        self.lgq.append(dict(regs=set(dst.regs()), tag=None))
        for r in dst.regs():
            self.vwrite.pop(r, None)
            self.twrite.pop(r, None)
            self.mfma_d.pop(r, None)
        self._track(dst.regs() + addr.regs())

    def ds_write(self, addr, src, offset=0):
        n = src.n
        mn = {1: 'ds_write_b32', 2: 'ds_write_b64', 4: 'ds_write_b128'}[n]
        assert 0 <= offset < 65536, offset
        self._wait_regs(src.regs() + addr.regs())
        self._haz_mem(src.regs() + addr.regs())
        off = f' offset:{offset}' if offset else ''
        self._emit(f'{mn} {addr}, {src}{off}')
        self.lgq.append(dict(regs=set(), tag=None))
        self._track(src.regs() + addr.regs())

    def salu(self, mn, *ops):
        for x in ops:
            if isinstance(x, R):
                self._track(x.regs())
                for r in x.regs():
                    if r in self.sg_valu:
                        self._need(self.sg_valu[r], 1)
        self._emit(f'{mn} ' + ', '.join(str(x) for x in ops))

    def label(self, name):
        self.lines.append(f'{name}:')

    def flush_hazards(self):
        self.nop(16)
        self.vwrite.clear(); self.twrite.clear(); self.mfma_d.clear(); self.mfma_c.clear()
        self.wstore.clear(); self.sg_valu.clear()

    def text(self):
        return '\n'.join(self.lines) + '\n'


def interleave(k, mains, fillers, lead=0):
    nm = len(mains)
    nf = len(fillers)
    fi = 0
    for _ in range(min(lead, nf)):
        fillers[fi](); fi += 1
    for i, m in enumerate(mains):
        m()
        tgt = lead + ((nf - lead) * (i + 1) + nm - 1) // nm if nm else nf
        while fi < min(tgt, nf):
            fillers[fi](); fi += 1
    while fi < nf:
        fillers[fi](); fi += 1
```

```python
import sys
from asmgen import Kern, R, v, a, s, interleave

S_TOK, D, H, DH, F = 2048, 512, 32, 16, 1792
KA_X, KA_WQKV, KA_WPHI, KA_WO, KA_BX, KA_WG, KA_WU, KA_WD, KA_OUT, KA_DBG, KA_WS = [8 * i for i in range(11)]
WS_LN1F = 0
WS_XF = 2 << 20
WS_KV = 4 << 20
WS_PHIQ = 8 << 20
WS_HF = 12 << 20
WS_ST = 14 << 20
WS_ACT = 16 << 20
SZ_FRAG = 2 << 20
SZ_KV = 32 * 32 * 32 * 4
SZ_PHIQ = 4 << 20
SZ_ST = 2048 * 16 * 8
SZ_ACT = 64 * 112 * 1024

LOG2E = 0x3fb8aa3b
NLOG2E = 0xbfb8aa3b


def f32bits(x):
    import struct
    return struct.unpack('<I', struct.pack('<f', x))[0]


def kernel_head(k, nwg):
    k.raw(f'.globl {k.name}')
    k.raw('.p2align 8')
    k.raw(f'.type {k.name},@function')
    k.raw(f'{k.name}:')
    k.salu('s_cmp_ge_u32', s(2), nwg)
    k.salu('s_cbranch_scc1', f'{k.name}_end')


def kernel_tail(k):
    k.raw(f'{k.name}_end:')
    k.raw('    s_endpgm')


def kd_block(k, lds_note=''):
    nv = k.maxv + 1
    na = k.maxa + 1
    if na > 0:
        acc_off = (nv + 3) // 4 * 4
        nfv = acc_off + na
    else:
        acc_off = (nv + 3) // 4 * 4
        nfv = nv
    return f'''.amdhsa_kernel {k.name}
  .amdhsa_next_free_vgpr {nfv}
  .amdhsa_next_free_sgpr {max(k.maxs + 1, 16)}
  .amdhsa_accum_offset {acc_off}
  .amdhsa_group_segment_fixed_size 0
  .amdhsa_kernarg_size 88
  .amdhsa_user_sgpr_count 2
  .amdhsa_user_sgpr_kernarg_segment_ptr 1
  .amdhsa_system_sgpr_workgroup_id_x 1
.end_amdhsa_kernel
'''


def load_ptr(k, dst, kaoff):
    k.salu('s_load_dwordx2', dst, s(0, 2), kaoff)


def srd_from(k, srd, ptr, off, size):
    if off:
        k.salu('s_add_u32', srd[0], ptr[0], off)
        k.salu('s_addc_u32', srd[1], ptr[1], 0)
    else:
        k.salu('s_mov_b32', srd[0], ptr[0])
        k.salu('s_mov_b32', srd[1], ptr[1])
    k.salu('s_mov_b32', srd[2], size)
    k.salu('s_mov_b32', srd[3], 0x00020000)


def allreduce_add(k, x, t):
    for m in ('quad_perm:[1,0,3,2]', 'quad_perm:[2,3,0,1]', 'row_half_mirror', 'row_mirror'):
        k.valu('v_add_f32_dpp', x, x, x, mods=f'{m} row_mask:0xf bank_mask:0xf')
    k.valu('v_mov_b32', t, x)
    k.valu('v_permlane16_swap_b32', x, t)
    k.valu('v_add_f32', x, x, t)
    k.valu('v_mov_b32', t, x)
    k.valu('v_permlane32_swap_b32', x, t)
    k.valu('v_add_f32', x, x, t)


def bf16r(k, x, t=None):
    k.valu('v_cvt_pk_bf16_f32', x, x, x)
    k.valu('v_lshlrev_b32', x, 16, x)


def unpack_lo(k, dst, src):
    k.valu('v_lshlrev_b32', dst, 16, src)


def unpack_hi(k, dst, src):
    k.valu('v_and_b32', dst, 0xffff0000, src)


def gen_k0():
    k = Kern('k0_ln1_kernel')
    kernel_head(k, 256)
    pX, pWS = s(4, 2), s(6, 2)
    load_ptr(k, pX, KA_X)
    load_ptr(k, pWS, KA_WS)
    lane, wv = v(1), v(2)
    k.valu('v_and_b32', lane, 63, v(0))
    k.valu('v_lshrrev_b32', wv, 6, v(0))
    k.wait_smem()
    sX, sL, sXF, sKV = s(8, 4), s(12, 4), s(16, 4), s(20, 4)
    srd_from(k, sX, pX, 0, SZ_FRAG)
    srd_from(k, sL, pWS, WS_LN1F, SZ_FRAG)
    srd_from(k, sXF, pWS, WS_XF, SZ_FRAG)
    srd_from(k, sKV, pWS, WS_KV, SZ_KV)
    vx = v(3)
    k.valu('v_lshlrev_b32', vx, 11, wv)
    k.valu('v_lshl_add_u32', vx, lane, 4, vx)
    k.salu('s_lshl_b32', s(24), s(2), 13)
    raw = [v(8, 4), v(12, 4)]
    k.bload(raw[0], vx, sX, s(24))
    k.bload(raw[1], vx, sX, s(24), offset=1024)
    vz, vzero = v(4), v(5)
    k.valu('v_and_b32', vz, 127, v(0))
    k.valu('v_lshlrev_b32', vz, 2, vz)
    k.valu('v_mov_b32', vzero, 0)
    k.salu('s_lshl_b32', s(25), s(2), 9)
    k.bstore(vzero, vz, sKV, s(25))
    vd = v(6)
    k.valu('v_lshrrev_b32', vd, 1, lane)
    k.valu('v_lshlrev_b32', vd, 10, vd)
    k.valu('v_and_b32', v(7), 1, lane)
    k.valu('v_lshl_add_u32', vd, v(7), 3, vd)
    k.valu('v_lshl_add_u32', vd, wv, 5, vd)
    k.salu('s_lshr_b32', s(26), s(2), 2)
    k.salu('s_lshl_b32', s(26), s(26), 15)
    k.salu('s_and_b32', s(27), s(2), 3)
    k.salu('s_lshl_b32', s(27), s(27), 7)
    k.salu('s_add_u32', s(26), s(26), s(27))
    for row in range(2):
        rw = raw[row]
        k.bstore(rw.sub(0, 2), vd, sXF, s(26), offset=row * 16)
        k.bstore(rw.sub(2, 2), vd, sXF, s(26), offset=row * 16 + 512)
    for row in range(2):
        rw = raw[row]
        xs = v(16 + 8 * row, 8)
        for j in range(4):
            unpack_lo(k, xs[2 * j], rw[j])
            unpack_hi(k, xs[2 * j + 1], rw[j])
        sm, t, q = v(32 + 4 * row), v(33 + 4 * row), v(34 + 4 * row)
        k.valu('v_add_f32', sm, xs[0], xs[1])
        for j in range(2, 8):
            k.valu('v_add_f32', sm, sm, xs[j])
        allreduce_add(k, sm, t)
        k.valu('v_mul_f32', sm, f32bits(1.0 / 512), sm)
        ds = v(40 + 8 * row, 8)
        for j in range(8):
            k.valu('v_sub_f32', ds[j], xs[j], sm)
        k.valu('v_mul_f32', q, ds[0], ds[0])
        for j in range(1, 8):
            k.valu('v_fmac_f32', q, ds[j], ds[j])
        allreduce_add(k, q, t)
        k.valu('v_mul_f32', q, f32bits(1.0 / 512), q)
        bf16r(k, sm)
        bf16r(k, q)
        k.valu('v_add_f32', q, f32bits(1e-5), q)
        bf16r(k, q)
        k.valu('v_sqrt_f32', q, q)
        bf16r(k, q)
        k.valu('v_rcp_f32', q, q)
        for j in range(8):
            k.valu('v_sub_f32', ds[j], xs[j], sm)
        pk = v(56 + 4 * row, 4)
        for j in range(4):
            k.valu('v_cvt_pk_bf16_f32', pk[j], ds[2 * j], ds[2 * j + 1])
        for j in range(4):
            unpack_lo(k, ds[2 * j], pk[j])
            unpack_hi(k, ds[2 * j + 1], pk[j])
        for j in range(8):
            k.valu('v_mul_f32', ds[j], ds[j], q)
        for j in range(4):
            k.valu('v_cvt_pk_bf16_f32', pk[j], ds[2 * j], ds[2 * j + 1])
        k.bstore(pk.sub(0, 2), vd, sL, s(26), offset=row * 16)
        k.bstore(pk.sub(2, 2), vd, sL, s(26), offset=row * 16 + 512)
    kernel_tail(k)
    return k, 256, 256, 0


def lane_decomp(k, lane, tmp0, tmp1):
    pass


def tr_base(k, dst, lane, pitch, matoff=None, t0=None, t1=None):
    k.valu('v_lshrrev_b32', t0, 5, lane)
    k.valu('v_lshlrev_b32', t0, 2, t0)
    k.valu('v_bfe_u32', t1, lane, 2, 2)
    k.valu('v_add_u32', t0, t0, t1)
    if pitch & (pitch - 1) == 0:
        k.valu('v_lshlrev_b32', dst, pitch.bit_length() - 1, t0)
    else:
        k.valu('v_mul_u32_u24', dst, pitch, t0)
    k.valu('v_bfe_u32', t0, lane, 4, 1)
    if matoff is None:
        k.valu('v_lshl_add_u32', dst, t0, 5, dst)
    else:
        k.valu('v_mul_u32_u24', t0, matoff, t0)
        k.valu('v_add_u32', dst, dst, t0)
    k.valu('v_and_b32', t1, 3, lane)
    k.valu('v_lshl_add_u32', dst, t1, 3, dst)


K1_W = 0
K1_WPHI = 98304
K1_P = 99328
K1_V = K1_P + 2 * 9216
K1_LDS = K1_V + 2 * 9216


def gen_k1():
    k = Kern('k1_qkv_kernel')
    kernel_head(k, 256)
    pWS, pW, pPH = s(4, 2), s(6, 2), s(8, 2)
    load_ptr(k, pWS, KA_WS)
    load_ptr(k, pW, KA_WQKV)
    load_ptr(k, pPH, KA_WPHI)
    lane, wvv = v(1), v(2)
    k.valu('v_and_b32', lane, 63, v(0))
    k.valu('v_lshrrev_b32', wvv, 6, v(0))
    sw = s(32)
    k.valu('v_readfirstlane_b32', sw, wvv)
    k.salu('s_lshr_b32', s(33), s(2), 4)
    k.salu('s_and_b32', s(34), s(2), 15)
    mblk, hp = s(33), s(34)
    k.wait_smem()
    sA, sWq, sPHI, sPQ, sKV = s(12, 4), s(16, 4), s(20, 4), s(24, 4), s(28, 4)
    srd_from(k, sA, pWS, WS_LN1F, SZ_FRAG)
    srd_from(k, sWq, pW, 0, D * 3 * D * 2)
    srd_from(k, sPHI, pPH, 0, H * DH * DH * 2)
    srd_from(k, sPQ, pWS, WS_PHIQ, SZ_PHIQ)
    srd_from(k, sKV, pWS, WS_KV, SZ_KV)
    vdma, vl16, vtr, vtr2 = v(3), v(4), v(5), v(6)
    t0, t1 = v(7), v(8)
    k.valu('v_lshrrev_b32', t0, 2, lane)
    k.valu('v_mul_u32_u24', vdma, 3072, t0)
    k.valu('v_and_b32', t1, 3, lane)
    k.valu('v_lshl_add_u32', vdma, t1, 4, vdma)
    k.valu('v_lshlrev_b32', vl16, 4, lane)
    tr_base(k, vtr, lane, 64, None, t0, t1)
    k.valu('v_add_u32', vtr2, 65536, vtr)
    sWbase, sM0base, sAbase, st = s(35), s(36), s(37), s(38)
    k.salu('s_mul_i32', sWbase, sw, 2 * 49152)
    k.salu('s_lshl_b32', st, hp, 6)
    k.salu('s_add_u32', sWbase, sWbase, st)
    k.salu('s_lshl_b32', sM0base, sw, 11)
    k.salu('s_lshl_b32', sAbase, mblk, 2)
    k.salu('s_add_u32', sAbase, sAbase, sw)
    k.salu('s_lshl_b32', sAbase, sAbase, 15)
    AF = v(16, 128)
    WF = [[v(144 + 12 * b + 4 * sg, 4) for sg in range(3)] for b in range(2)]
    ACC = [v(168 + 16 * sg, 16) for sg in range(3)]
    for sg in range(3):
        for j in range(16):
            k.valu('v_mov_b32', ACC[sg][j], 0)
    k.set_m0(K1_WPHI)
    k.salu('s_lshl_b32', st, hp, 10)
    k.dma(vl16, sPHI, st, tag=('w', 0))
    for c in range(4):
        for sg in range(3):
            for e in range(2):
                kg = 8 * c + e
                k.salu('s_add_u32', R('s', 39), sM0base, sg * 32768 + kg * 1024)
                k.set_m0(R('s', 39))
                k.salu('s_add_u32', st, sWbase, kg * 49152 + sg * 1024)
                k.dma(vdma, sWq, st, tag=('w', c))
        for q4 in range(2):
            k.salu('s_add_u32', st, sAbase, (8 * c + 4 * q4) * 1024)
            for e in range(4):
                ks = 8 * c + 4 * q4 + e
                k.bload(AF.sub(4 * ks, 4), vl16, sA, st, offset=e * 1024)

    def wreads(ks):
        out = []
        buf = ks & 1
        for sg in range(3):
            for t in range(2):
                off = sg * 32768 + ks * 1024 + t * 512
                base = vtr
                if off >= 65536:
                    base, off = vtr2, off - 65536
                out.append(lambda sg=sg, t=t, off=off, base=base, buf=buf:
                           k.ds_read(WF[buf][sg].sub(2 * t, 2), base, off, tr=True))
        return out

    k.wait_tag(('w', 0))
    k.barrier()
    for th in wreads(0):
        th()
    for ks in range(32):
        mains = [lambda sg=sg, ks=ks: k.mfma(ACC[sg], WF[ks & 1][sg], AF.sub(4 * ks, 4), ACC[sg]) for sg in range(3)]
        fillers = []
        if ks + 1 < 32:
            if (ks + 1) % 8 == 0:
                c = (ks + 1) // 8
                fillers.append(lambda c=c: (k.wait_tag(('w', c)), k.barrier()))
            fillers += wreads(ks + 1)
        interleave(k, mains, fillers)

    sL, sNL = s(40), s(41)
    k.salu('s_mov_b32', sL, LOG2E)
    k.salu('s_mov_b32', sNL, NLOG2E)
    vphi, vsgn = v(9), v(10)
    tr_base(k, vphi, lane, 32, 0, t0, t1)
    k.valu('v_add_u32', vphi, K1_WPHI, vphi)
    k.valu('v_and_b32', t0, 16, lane)
    k.valu('v_lshlrev_b32', t0, 27, t0)
    k.valu('v_lshrrev_b32', t1, 16, t0)
    k.valu('v_or_b32', vsgn, t0, t1)
    PHF = [AF.sub(8 * hh, 4) for hh in range(2)]
    for hh in range(2):
        for t in range(2):
            k.ds_read(PHF[hh].sub(2 * t, 2), vphi, hh * 512 + t * 256, tr=True)
    for hh in range(2):
        for j in range(4):
            k.valu('v_xor_b32', PHF[hh][j], PHF[hh][j], vsgn)
    BQ = {}
    for xi, X in enumerate((0, 1)):
        for hh in range(2):
            fr = AF.sub(16 + 8 * xi + 4 * hh, 4)
            BQ[(X, hh)] = fr
            for i in range(4):
                k.valu('v_cvt_pk_bf16_f32', fr[i], ACC[X][8 * hh + 2 * i], ACC[X][8 * hh + 2 * i + 1])
    DP = {}
    for xi, X in enumerate((0, 1)):
        for hh in range(2):
            d = AF.sub(32 + 32 * xi + 16 * hh, 16)
            DP[(X, hh)] = d
            k.mfma(d, PHF[hh], BQ[(X, hh)], 0)
    groups = []
    for X in (0, 1):
        for hh in range(2):
            for half in range(2):
                groups.append(DP[(X, hh)].sub(8 * half, 8))
    TM = [v(112 + 2 * gi) for gi in range(8)]
    TT = [v(113 + 2 * gi) for gi in range(8)]
    for gi, g in enumerate(groups):
        k.valu('v_max3_f32', TM[gi], g[0], g[1], g[2])
    for gi, g in enumerate(groups):
        k.valu('v_max3_f32', TM[gi], TM[gi], g[3], g[4])
    for gi, g in enumerate(groups):
        k.valu('v_max3_f32', TM[gi], TM[gi], g[5], g[6])
    for gi, g in enumerate(groups):
        k.valu('v_max_f32', TM[gi], TM[gi], g[7])
    for gi in range(8):
        k.valu('v_mov_b32', TT[gi], TM[gi])
    for gi in range(8):
        k.valu('v_permlane32_swap_b32', TM[gi], TT[gi])
    for gi in range(8):
        k.valu('v_max_f32', TM[gi], TM[gi], TT[gi])
    for gi in range(8):
        k.valu('v_mul_f32', TM[gi], sNL, TM[gi])
    for j in range(8):
        for gi, g in enumerate(groups):
            k.valu('v_fma_f32', g[j], g[j], sL, TM[gi])
    for j in range(8):
        for gi, g in enumerate(groups):
            k.valu('v_exp_f32', g[j], g[j])
    for gi, g in enumerate(groups):
        k.valu('v_add_f32', TM[gi], g[0], g[1])
    for j in range(2, 8):
        for gi, g in enumerate(groups):
            k.valu('v_add_f32', TM[gi], TM[gi], g[j])
    for gi in range(8):
        k.valu('v_mov_b32', TT[gi], TM[gi])
    for gi in range(8):
        k.valu('v_permlane32_swap_b32', TM[gi], TT[gi])
    for gi in range(8):
        k.valu('v_add_f32', TM[gi], TM[gi], TT[gi])
    for gi in range(8):
        k.valu('v_rcp_f32', TM[gi], TM[gi])
    for j in range(8):
        for gi, g in enumerate(groups):
            k.valu('v_mul_f32', g[j], g[j], TM[gi])
    PK = [v(168 + 4 * gi, 4) for gi in range(8)]
    for i in range(4):
        for gi, g in enumerate(groups):
            k.valu('v_cvt_pk_bf16_f32', PK[gi][i], g[2 * i], g[2 * i + 1])
    k.salu('s_lshl_b32', st, sAbase, 1)
    k.salu('s_lshl_b32', R('s', 39), hp, 12)
    k.salu('s_add_u32', st, st, R('s', 39))
    for hh in range(2):
        for half in range(2):
            k.bstore(PK[2 * hh + half], vl16, sPQ, st, offset=hh * 2048 + half * 1024)
    vP, vV = v(11), v(12)
    k.valu('v_and_b32', t0, 31, lane)
    k.valu('v_lshl_add_u32', t0, wvv, 5, t0)
    k.valu('v_mul_u32_u24', vP, 72, t0)
    k.valu('v_lshrrev_b32', t1, 5, lane)
    k.valu('v_lshl_add_u32', vP, t1, 3, vP)
    k.valu('v_add_u32', vV, K1_V, vP)
    k.valu('v_add_u32', vP, K1_P, vP)
    for hh in range(2):
        for half in range(2):
            pk = PK[4 + 2 * hh + half]
            k.ds_write(vP, pk.sub(0, 2), hh * 9216 + half * 32)
            k.ds_write(vP, pk.sub(2, 2), hh * 9216 + half * 32 + 16)
    VPK = [v(144 + 4 * hh, 4) for hh in range(2)]
    for hh in range(2):
        for i in range(4):
            k.valu('v_cvt_pk_bf16_f32', VPK[hh][i], ACC[2][8 * hh + 2 * i], ACC[2][8 * hh + 2 * i + 1])
    for hh in range(2):
        k.ds_write(vV, VPK[hh].sub(0, 2), hh * 9216)
        k.ds_write(vV, VPK[hh].sub(2, 2), hh * 9216 + 16)
    vone = v(152)
    k.valu('v_mov_b32', vone, 0x3f80)
    k.valu('v_cmp_eq_u32', 'vcc', 0, t1)
    k.nop(2)
    k.valu('v_cndmask_b32', vone, 0, vone, 'vcc')
    for hh in range(2):
        k.ds_write(vV, vone, hh * 9216 + 32)
    k.wait_lgkm(0)
    k.barrier()
    k.flush_hazards()
    k.salu('s_cmp_ge_u32', sw, 2)
    k.salu('s_cbranch_scc1', f'{k.name}_end')
    vtp, vtv = v(13), v(14)
    tr_base(k, vtp, lane, 72, None, t0, t1)
    k.salu('s_mul_i32', st, sw, 9216)
    k.valu('v_add_u32', vtp, st, vtp)
    k.valu('v_add_u32', vtv, K1_V, vtp)
    k.valu('v_add_u32', vtp, K1_P, vtp)
    KVD = v(16, 16)
    FA = [v(32 + 8 * b, 4) for b in range(2)]
    FB = [v(36 + 8 * b, 4) for b in range(2)]

    def kvreads(u):
        b = u & 1
        for t in range(2):
            k.ds_read(FA[b].sub(2 * t, 2), vtv, u * 1152 + t * 576, tr=True)
            k.ds_read(FB[b].sub(2 * t, 2), vtp, u * 1152 + t * 576, tr=True)
    kvreads(0)
    for u in range(8):
        if u + 1 < 8:
            kvreads(u + 1)
        k.mfma(KVD, FA[u & 1], FB[u & 1], KVD if u else 0)
    vkv = v(15)
    k.valu('v_and_b32', t0, 31, lane)
    k.valu('v_lshlrev_b32', vkv, 2, t0)
    k.valu('v_lshrrev_b32', t1, 5, lane)
    k.valu('v_lshl_add_u32', vkv, t1, 9, vkv)
    k.salu('s_lshl_b32', st, hp, 1)
    k.salu('s_add_u32', st, st, sw)
    k.salu('s_lshl_b32', st, st, 12)
    for r in range(8):
        i, j = r // 4, r % 4
        k.batomic_add_f32(KVD[r], vkv, sKV, st, offset=(8 * i + j) * 128)
    k.salu('s_mov_b32', 'exec_hi', 0)
    k.batomic_add_f32(KVD[8], vkv, sKV, st, offset=16 * 128)
    k.salu('s_mov_b32', 'exec_hi', -1)
    kernel_tail(k)
    return k, 256, 256, K1_LDS


K2_KVF = 0
K2_WO = 65536
K2_RED = 131072
K2_LDS = K2_RED + 16384


def gen_k2():
    k = Kern('k2_attn_kernel')
    kernel_head(k, 256)
    pWS, pWO = s(4, 2), s(6, 2)
    load_ptr(k, pWS, KA_WS)
    load_ptr(k, pWO, KA_WO)
    lane, wvv = v(1), v(2)
    k.valu('v_and_b32', lane, 63, v(0))
    k.valu('v_lshrrev_b32', wvv, 6, v(0))
    sw = s(36)
    k.valu('v_readfirstlane_b32', sw, wvv)
    nblk, mblk = s(37), s(38)
    k.salu('s_lshr_b32', nblk, s(2), 5)
    k.salu('s_and_b32', mblk, s(2), 31)
    k.wait_smem()
    sPQ, sKV, sWOd, sXF, sHF, sST = s(8, 4), s(12, 4), s(16, 4), s(20, 4), s(24, 4), s(28, 4)
    srd_from(k, sPQ, pWS, WS_PHIQ, SZ_PHIQ)
    srd_from(k, sKV, pWS, WS_KV, SZ_KV)
    srd_from(k, sWOd, pWO, 0, D * D * 2)
    srd_from(k, sXF, pWS, WS_XF, SZ_FRAG)
    srd_from(k, sHF, pWS, WS_HF, SZ_FRAG)
    srd_from(k, sST, pWS, WS_ST, SZ_ST)
    stbl, shh, stb = s(39), s(40), s(41)
    k.salu('s_lshr_b32', stbl, sw, 1)
    k.salu('s_and_b32', shh, sw, 1)
    k.salu('s_lshl_b32', stb, mblk, 1)
    k.salu('s_add_u32', stb, stb, stbl)
    st, st2 = s(42), s(43)
    vdma, vl16, vtr, vkv, vkvw = v(3), v(4), v(5), v(6), v(7)
    t0, t1 = v(8), v(9)
    k.valu('v_lshrrev_b32', t0, 2, lane)
    k.valu('v_lshlrev_b32', vdma, 10, t0)
    k.valu('v_and_b32', t1, 3, lane)
    k.valu('v_lshl_add_u32', vdma, t1, 4, vdma)
    k.valu('v_lshlrev_b32', vl16, 4, lane)
    tr_base(k, vtr, lane, 64, None, t0, t1)
    k.valu('v_add_u32', vtr, K2_WO, vtr)
    k.valu('v_and_b32', t0, 31, lane)
    k.valu('v_lshlrev_b32', vkv, 7, t0)
    k.valu('v_lshrrev_b32', t1, 5, lane)
    k.valu('v_lshl_add_u32', vkv, t1, 4, vkv)
    k.valu('v_lshl_add_u32', vkvw, wvv, 14, vl16)
    sWb, sM0b = s(44), s(45)
    k.salu('s_lshl_b32', sWb, sw, 17)
    k.salu('s_lshl_b32', st, nblk, 7)
    k.salu('s_add_u32', sWb, sWb, st)
    k.salu('s_lshl_b32', sM0b, sw, 13)
    for nb in range(2):
        for e in range(8):
            k.salu('s_add_u32', st2, sM0b, K2_WO + nb * 32768 + e * 1024)
            k.set_m0(st2)
            k.salu('s_add_u32', st, sWb, e * 16384 + nb * 64)
            k.dma(vdma, sWOd, st, tag='wo')
    skv = s(46)
    k.salu('s_lshl_b32', skv, sw, 15)
    KL = v(32, 64)
    for half in range(2):
        for hl in range(4):
            for ks in range(2):
                fr = KL.sub(16 * hl + 8 * ks, 8)
                k.salu('s_add_u32', st, skv, (4 * half + hl) * 4096)
                k.bload(fr.sub(0, 4), vkv, sKV, st, offset=64 * ks)
                k.bload(fr.sub(4, 4), vkv, sKV, st, offset=64 * ks + 32)
        for hl in range(4):
            for ks in range(2):
                fr = KL.sub(16 * hl + 8 * ks, 8)
                pk = v(96 + 4 * (2 * hl + ks), 4)
                for i in range(4):
                    k.valu('v_cvt_pk_bf16_f32', pk[i], fr[2 * i], fr[2 * i + 1])
                k.ds_write(vkvw, pk, ((4 * half + hl) * 2 + ks) * 1024)
    PQ = [v(32 + 8 * i, 8) for i in range(4)]
    spq = s(47)
    k.salu('s_lshl_b32', spq, stb, 5)
    k.salu('s_lshl_b32', st, shh, 4)
    k.salu('s_add_u32', spq, spq, st)
    k.salu('s_lshl_b32', spq, spq, 11)
    XFR = v(24, 8)
    sxf = s(48)
    k.salu('s_lshl_b32', sxf, stb, 5)
    k.salu('s_lshl_b32', st, nblk, 2)
    k.salu('s_add_u32', sxf, sxf, st)
    k.salu('s_lshl_b32', st, shh, 1)
    k.salu('s_add_u32', sxf, sxf, st)
    k.salu('s_lshl_b32', sxf, sxf, 10)

    def pqload(t):
        k.salu('s_add_u32', st, spq, t * 2048)
        k.bload(PQ[t % 4].sub(0, 4), vl16, sPQ, st)
        k.bload(PQ[t % 4].sub(4, 4), vl16, sPQ, st, offset=1024)
    k.bload(XFR.sub(0, 4), vl16, sXF, sxf)
    k.bload(XFR.sub(4, 4), vl16, sXF, sxf, offset=1024)
    for t in range(4):
        pqload(t)
    ACC = [v(128 + 16 * nb, 16) for nb in range(2)]
    DO = [v(160 + 16 * i, 16) for i in range(2)]
    OF = [v(192 + 4 * i, 4) for i in range(2)]
    KF = [v(200 + 8 * i, 8) for i in range(3)]
    WFr = [v(224 + 8 * i, 8) for i in range(2)]
    TX, TY = v(10), v(11)
    for nb in range(2):
        for j in range(16):
            k.valu('v_mov_b32', ACC[nb][j], 0)
    vkf, vtrh = v(12), v(13)
    k.salu('s_lshl_b32', st, shh, 15)
    k.valu('v_add_u32', vkf, st, vl16)
    k.salu('s_lshl_b32', st, shh, 14)
    k.valu('v_add_u32', vtrh, st, vtr)
    k.wait_tag('wo')
    k.wait_lgkm(0)
    k.barrier()

    def kfread(t):
        return [lambda t=t: k.ds_read(KF[t % 3].sub(0, 4), vkf, t * 2048),
                lambda t=t: k.ds_read(KF[t % 3].sub(4, 4), vkf, t * 2048 + 1024)]

    def wfread(t):
        out = []
        for nb in range(2):
            for tt in range(2):
                out.append(lambda t=t, nb=nb, tt=tt:
                           k.ds_read(WFr[t % 2].sub(4 * nb + 2 * tt, 2), vtrh, nb * 32768 + t * 1024 + tt * 512, tr=True))
        return out

    def o_mfma(t):
        return [lambda t=t: k.mfma(DO[t % 2], KF[t % 3].sub(0, 4), PQ[t % 4].sub(0, 4), 0),
                lambda t=t: k.mfma(DO[t % 2], KF[t % 3].sub(4, 4), PQ[t % 4].sub(4, 4), DO[t % 2])]

    def norm_ops(t):
        d = DO[t % 2]
        of = OF[t % 2]
        ops = [lambda: k.valu('v_mov_b32', TX, d[8]),
               lambda: k.valu('v_mov_b32', TY, d[8]),
               lambda: k.valu('v_permlane32_swap_b32', TX, TY),
               lambda: k.valu('v_add_f32', TX, f32bits(1e-6), TX),
               lambda: k.valu('v_rcp_f32', TX, TX)]
        for j in range(8):
            ops.append(lambda j=j: k.valu('v_mul_f32', d[j], d[j], TX))
        for i in range(4):
            ops.append(lambda i=i: k.valu('v_cvt_pk_bf16_f32', of[i], d[2 * i], d[2 * i + 1]))
        return ops

    def main_mfma(t):
        return [lambda t=t, nb=nb: k.mfma(ACC[nb], WFr[t % 2].sub(4 * nb, 4), OF[t % 2], ACC[nb]) for nb in range(2)]

    for th in kfread(0) + kfread(1) + wfread(0):
        th()
    for th in o_mfma(0):
        th()
    for th in kfread(2):
        th()
    for th in o_mfma(1):
        th()
    for th in norm_ops(0):
        th()
    for t in range(16):
        mains = main_mfma(t) + (o_mfma(t + 2) if t + 2 < 16 else [])
        fillers = []
        if t + 1 < 16:
            fillers += wfread(t + 1)
        if t + 3 < 16:
            fillers += kfread(t + 3)
        if t + 4 < 16:
            fillers.append(lambda t=t: pqload(t + 4))
        if t + 1 < 16:
            fillers += norm_ops(t + 1)
        interleave(k, mains, fillers)
    vred = v(14)
    k.valu('v_lshl_add_u32', vred, wvv, 12, vl16)
    k.valu('v_add_u32', vred, K2_RED, vred)
    k.flush_hazards()
    k.salu('s_cmp_eq_u32', shh, 0)
    k.salu('s_cbranch_scc1', f'{k.name}_hh0')
    FIN = v(64, 16)

    def exchange(send, keep):
        for q in range(4):
            k.ds_write(vred, send.sub(4 * q, 4), q * 1024)
        for j in range(16):
            k.valu('v_mov_b32', FIN[j], keep[j])
    exchange(ACC[0], ACC[1])
    k.flush_hazards()
    k.salu('s_branch', f'{k.name}_hhdone')
    k.label(f'{k.name}_hh0')
    exchange(ACC[1], ACC[0])
    k.flush_hazards()
    k.label(f'{k.name}_hhdone')
    k.wait_lgkm(0)
    k.barrier()
    vrd = v(15)
    k.valu('v_xor_b32', vrd, 4096, vred)
    PRT = v(80, 16)
    for q in range(4):
        k.ds_read(PRT.sub(4 * q, 4), vrd, q * 1024)
    for j in range(16):
        k.valu('v_add_f32', FIN[j], FIN[j], PRT[j])
    AP = v(96, 8)
    for i in range(8):
        k.valu('v_cvt_pk_bf16_f32', AP[i], FIN[2 * i], FIN[2 * i + 1])
    XA, XB = v(104, 16), v(120, 16)
    for i in range(8):
        unpack_lo(k, XA[2 * i], AP[i])
        unpack_hi(k, XA[2 * i + 1], AP[i])
        unpack_lo(k, XB[2 * i], XFR[i])
        unpack_hi(k, XB[2 * i + 1], XFR[i])
    for j in range(16):
        k.valu('v_add_f32', XA[j], XA[j], XB[j])
    HP = v(136, 8)
    for i in range(8):
        k.valu('v_cvt_pk_bf16_f32', HP[i], XA[2 * i], XA[2 * i + 1])
    k.bstore(HP.sub(0, 4), vl16, sHF, sxf)
    k.bstore(HP.sub(4, 4), vl16, sHF, sxf, offset=1024)
    for i in range(8):
        unpack_lo(k, XA[2 * i], HP[i])
        unpack_hi(k, XA[2 * i + 1], HP[i])
    sm, tq = v(144), v(145)
    k.valu('v_add_f32', sm, XA[0], XA[1])
    for j in range(2, 16):
        k.valu('v_add_f32', sm, sm, XA[j])
    k.valu('v_mov_b32', tq, sm)
    k.valu('v_permlane32_swap_b32', sm, tq)
    k.valu('v_add_f32', sm, sm, tq)
    k.valu('v_mul_f32', sm, f32bits(1.0 / 32), sm)
    q2 = v(146)
    for j in range(16):
        k.valu('v_sub_f32', XA[j], XA[j], sm)
    k.valu('v_mul_f32', q2, XA[0], XA[0])
    for j in range(1, 16):
        k.valu('v_fmac_f32', q2, XA[j], XA[j])
    k.valu('v_mov_b32', tq, q2)
    k.valu('v_permlane32_swap_b32', q2, tq)
    k.valu('v_add_f32', q2, q2, tq)
    MS = v(148, 2)
    k.valu('v_mov_b32', MS[0], sm)
    k.valu('v_mov_b32', MS[1], q2)
    vst = v(147)
    k.valu('v_and_b32', vst, 31, lane)
    k.valu('v_lshlrev_b32', vst, 7, vst)
    k.salu('s_lshl_b32', st, stb, 12)
    k.salu('s_lshl_b32', st2, nblk, 1)
    k.salu('s_add_u32', st2, st2, shh)
    k.salu('s_lshl_b32', st2, st2, 3)
    k.salu('s_add_u32', st, st, st2)
    k.bstore(MS, vst, sST, st)
    kernel_tail(k)
    return k, 256, 256, K2_LDS


K3_MAT = 14464
K3_SLOT = 28928
K3_NS = 5
K3_LDS = K3_SLOT * K3_NS


def gen_k3():
    k = Kern('k3_ffn1_kernel')
    kernel_head(k, 256)
    pWS, pG, pU = s(4, 2), s(6, 2), s(8, 2)
    load_ptr(k, pWS, KA_WS)
    load_ptr(k, pG, KA_WG)
    load_ptr(k, pU, KA_WU)
    lane, wvv = v(1), v(2)
    k.valu('v_and_b32', lane, 63, v(0))
    k.valu('v_lshrrev_b32', wvv, 6, v(0))
    sw = s(32)
    k.valu('v_readfirstlane_b32', sw, wvv)
    mblk, nblk = s(33), s(34)
    k.salu('s_lshr_b32', mblk, s(2), 4)
    k.salu('s_and_b32', nblk, s(2), 15)
    k.wait_smem()
    sHF, sST, sACT, sWm = s(12, 4), s(16, 4), s(20, 4), s(24, 4)
    srd_from(k, sHF, pWS, WS_HF, SZ_FRAG)
    srd_from(k, sST, pWS, WS_ST, SZ_ST)
    srd_from(k, sACT, pWS, WS_ACT, SZ_ACT)
    k.salu('s_cmp_lt_u32', sw, 2)
    k.salu('s_cselect_b32', sWm[0], pG[0], pU[0])
    k.salu('s_cselect_b32', sWm[1], pG[1], pU[1])
    k.salu('s_mov_b32', sWm[2], D * F * 2)
    k.salu('s_mov_b32', sWm[3], 0x00020000)
    st, st2 = s(35), s(36)
    stb = s(37)
    k.salu('s_lshl_b32', stb, mblk, 2)
    k.salu('s_add_u32', stb, stb, sw)
    t0, t1, t2 = v(8), v(9), v(10)
    VD = [v(16 + e) for e in range(7)]
    k.valu('v_and_b32', t2, 1, wvv)
    k.valu('v_mul_u32_u24', t2, 448, t2)
    k.valu('v_add_u32', t2, t2, lane)
    for e in range(7):
        k.valu('v_add_u32', t0, 64 * e, t2)
        k.valu('v_mul_u32_u24', t1, 4682, t0)
        k.valu('v_lshrrev_b32', t1, 16, t1)
        k.valu('v_mul_u32_u24', VD[e], 14, t1)
        k.valu('v_sub_u32', VD[e], t0, VD[e])
        k.valu('v_lshlrev_b32', VD[e], 4, VD[e])
        k.valu('v_mul_u32_u24', t1, 3584, t1)
        k.valu('v_add_u32', VD[e], VD[e], t1)
    vl16, vtr = v(3), v(4)
    k.valu('v_lshlrev_b32', vl16, 4, lane)
    tr_base(k, vtr, lane, 224, K3_MAT, t0, t1)
    sWb, sM0b = s(38), s(39)
    k.salu('s_mul_i32', sWb, nblk, 224)
    k.salu('s_lshr_b32', st, sw, 1)
    k.salu('s_mul_i32', sM0b, st, K3_MAT)
    k.salu('s_and_b32', st, sw, 1)
    k.salu('s_mul_i32', st, st, 7 * 1024)
    k.salu('s_add_u32', sM0b, sM0b, st)

    def stage_dma(stg):
        slot = stg % K3_NS
        for e in range(7):
            k.salu('s_add_u32', st2, sM0b, slot * K3_SLOT + e * 1024)
            k.set_m0(st2)
            k.salu('s_add_u32', st, sWb, stg * 64 * 3584)
            k.dma(VD[e], sWm, st, tag=('w', stg))
    SR = v(32, 32)
    vst = v(5)
    k.valu('v_and_b32', vst, 31, lane)
    k.valu('v_lshlrev_b32', vst, 7, vst)
    k.salu('s_lshl_b32', st, stb, 12)
    for q in range(8):
        k.bload(SR.sub(4 * q, 4), vst, sST, st, offset=16 * q)
    for stg in range(4):
        stage_dma(stg)
    RAW = [v(64 + 4 * i, 4) for i in range(4)]
    NRM = [v(80 + 4 * i, 4) for i in range(2)]
    UT = v(88, 8)
    shf = s(40)
    k.salu('s_lshl_b32', shf, stb, 15)

    def hload(ks):
        if ks % 4 == 0:
            k.salu('s_add_u32', st, shf, ks * 1024)
        else:
            k.salu('s_add_u32', st, shf, (ks - ks % 4) * 1024)
        k.bload(RAW[ks % 4], vl16, sHF, st, offset=(ks % 4) * 1024)
    for ks in range(3):
        hload(ks)
    mean, m2, rs, nmr = v(6), v(7), v(11), v(12)
    k.valu('v_add_f32', mean, SR[0], SR[2])
    for i in range(2, 16):
        k.valu('v_add_f32', mean, mean, SR[2 * i])
    k.valu('v_mul_f32', mean, f32bits(1.0 / 16), mean)
    k.valu('v_add_f32', m2, SR[1], SR[3])
    for i in range(2, 16):
        k.valu('v_add_f32', m2, m2, SR[2 * i + 1])
    for i in range(16):
        k.valu('v_sub_f32', SR[2 * i], SR[2 * i], mean)
    k.valu('v_mul_f32', t0, SR[0], SR[0])
    for i in range(1, 16):
        k.valu('v_fmac_f32', t0, SR[2 * i], SR[2 * i])
    k.valu('v_mul_f32', t0, f32bits(32.0), t0)
    k.valu('v_add_f32', m2, m2, t0)
    k.valu('v_mul_f32', m2, f32bits(1.0 / 512), m2)
    bf16r(k, mean)
    bf16r(k, m2)
    k.valu('v_add_f32', m2, f32bits(1e-5), m2)
    bf16r(k, m2)
    k.valu('v_sqrt_f32', m2, m2)
    bf16r(k, m2)
    k.valu('v_rcp_f32', rs, m2)
    k.valu('v_mul_f32', nmr, mean, rs)
    k.valu('v_sub_f32', nmr, 0, nmr)

    def norm_ops(ks):
        raw, nrm = RAW[ks % 4], NRM[ks % 2]
        ops = []
        for i in range(4):
            ops.append(lambda i=i: unpack_lo(k, UT[2 * i], raw[i]))
            ops.append(lambda i=i: unpack_hi(k, UT[2 * i + 1], raw[i]))
        for j in range(8):
            ops.append(lambda j=j: k.valu('v_fma_f32', UT[j], UT[j], rs, nmr))
        for i in range(4):
            ops.append(lambda i=i: k.valu('v_cvt_pk_bf16_f32', nrm[i], UT[2 * i], UT[2 * i + 1]))
        return ops
    ACC = [v(96 + 16 * b, 16) for b in range(7)]
    for b in range(7):
        for j in range(16):
            k.valu('v_mov_b32', ACC[b][j], 0)
    WF = [[a(28 * buf + 4 * b, 4) for b in range(7)] for buf in range(2)]
    vts = [v(13), v(14)]

    def wreads(ks):
        stg, kl = ks // 4, ks % 4
        base = vts[stg % 2]
        out = []
        for b in range(7):
            for t in range(2):
                out.append(lambda b=b, t=t, kl=kl, base=base, ks=ks:
                           k.ds_read(WF[ks & 1][b].sub(2 * t, 2), base, kl * 3584 + t * 1792 + 32 * b, tr=True))
        return out
    for th in norm_ops(0):
        th()
    k.valu('v_add_u32', vts[0], (0 % K3_NS) * K3_SLOT, vtr)
    k.wait_tag(('w', 0))
    k.barrier()
    for th in wreads(0):
        th()
    for ks in range(32):
        stg, kl = ks // 4, ks % 4
        mains = [lambda b=b, ks=ks: k.mfma(ACC[b], WF[ks & 1][b], NRM[ks % 2], ACC[b]) for b in range(7)]
        fillers = []
        if ks + 1 < 32:
            if (ks + 1) % 4 == 0:
                ns = (ks + 1) // 4

                def sync_stage(ns=ns):
                    k.wait_tag(('w', ns))
                    k.barrier()
                    k.valu('v_add_u32', vts[ns % 2], (ns % K3_NS) * K3_SLOT, vtr)
                fillers.append(sync_stage)
                if ns + 3 < 8:
                    fillers.append(lambda ns=ns: stage_dma(ns + 3))
            fillers += wreads(ks + 1)
            fillers += norm_ops(ks + 1)
        if ks + 3 < 32:
            fillers.append(lambda ks=ks: hload(ks + 3))
        interleave(k, mains, fillers)
    sNL = s(41)
    k.salu('s_mov_b32', sNL, NLOG2E)
    sact = s(42)
    k.salu('s_mul_i32', sact, stb, 112)
    k.salu('s_mul_i32', st, nblk, 7)
    k.salu('s_add_u32', sact, sact, st)
    k.salu('s_lshl_b32', sact, sact, 10)
    E = v(208, 8)
    for b in range(7):
        g, u = ACC[b].sub(0, 8), ACC[b].sub(8, 8)
        for j in range(8):
            k.valu('v_mul_f32', E[j], sNL, g[j])
        for j in range(8):
            k.valu('v_exp_f32', E[j], E[j])
        for j in range(8):
            k.valu('v_add_f32', E[j], 1.0, E[j])
        for j in range(8):
            k.valu('v_rcp_f32', E[j], E[j])
        for j in range(8):
            k.valu('v_mul_f32', g[j], g[j], E[j])
        for j in range(8):
            k.valu('v_mul_f32', g[j], g[j], u[j])
        pk = ACC[b].sub(0, 4)
        for i in range(4):
            k.valu('v_cvt_pk_bf16_f32', pk[i], g[2 * i], g[2 * i + 1])
        if b % 4 == 0:
            k.salu('s_add_u32', st, sact, b * 1024)
        k.bstore(pk, vl16, sACT, st, offset=(b % 4) * 1024)
    kernel_tail(k)
    return k, 256, 256, K3_LDS


K4_R = 12
K4_LDS = 4 * K4_R * 2048


def gen_k4():
    k = Kern('k4_ffn2_kernel')
    kernel_head(k, 256)
    pWS, pWD, pOUT = s(4, 2), s(6, 2), s(8, 2)
    load_ptr(k, pWS, KA_WS)
    load_ptr(k, pWD, KA_WD)
    load_ptr(k, pOUT, KA_OUT)
    lane, wvv = v(1), v(2)
    k.valu('v_and_b32', lane, 63, v(0))
    k.valu('v_lshrrev_b32', wvv, 6, v(0))
    sw = s(32)
    k.valu('v_readfirstlane_b32', sw, wvv)
    nblk, mblk = s(33), s(34)
    k.salu('s_lshr_b32', nblk, s(2), 5)
    k.salu('s_and_b32', mblk, s(2), 31)
    k.wait_smem()
    sACT, sWd, sHF, sOUT = s(12, 4), s(16, 4), s(20, 4), s(24, 4)
    srd_from(k, sACT, pWS, WS_ACT, SZ_ACT)
    srd_from(k, sWd, pWD, 0, F * D * 2)
    srd_from(k, sHF, pWS, WS_HF, SZ_FRAG)
    srd_from(k, sOUT, pOUT, 0, S_TOK * D * 2)
    st, st2 = s(35), s(36)
    vdma, vl16, vtr = v(3), v(4), v(5)
    t0, t1 = v(8), v(9)
    k.valu('v_lshrrev_b32', t0, 2, lane)
    k.valu('v_lshlrev_b32', vdma, 10, t0)
    k.valu('v_and_b32', t1, 3, lane)
    k.valu('v_lshl_add_u32', vdma, t1, 4, vdma)
    k.valu('v_lshlrev_b32', vl16, 4, lane)
    tr_base(k, vtr, lane, 64, None, t0, t1)
    sring = s(37)
    k.salu('s_mul_i32', sring, sw, K4_R * 2048)
    k.valu('v_add_u32', vtr, sring, vtr)
    sWb, sAb0, sAb1 = s(38), s(39), s(40)
    k.salu('s_mul_i32', sWb, sw, 28 * 16 * 1024)
    k.salu('s_lshl_b32', st, nblk, 7)
    k.salu('s_add_u32', sWb, sWb, st)
    k.salu('s_lshl_b32', sAb0, mblk, 1)
    k.salu('s_mul_i32', sAb0, sAb0, 112)
    k.salu('s_mul_i32', st, sw, 28)
    k.salu('s_add_u32', sAb0, sAb0, st)
    k.salu('s_lshl_b32', sAb0, sAb0, 10)
    k.salu('s_add_u32', sAb1, sAb0, 112 * 1024)

    def wdma(j):
        slot = j % K4_R
        for nb in range(2):
            k.salu('s_add_u32', st2, sring, slot * 2048 + nb * 1024)
            k.set_m0(st2)
            k.salu('s_add_u32', st, sWb, j * 16384 + nb * 64)
            k.dma(vdma, sWd, st, tag=('w', j))
    AFR = [[v(16 + 8 * i + 4 * tb, 4) for tb in range(2)] for i in range(4)]

    def aload(j):
        for tb, base in ((0, sAb0), (1, sAb1)):
            if j % 4 == 0:
                k.salu('s_add_u32', [s(41), s(42)][tb], base, j * 1024)
            k.bload(AFR[j % 4][tb], vl16, sACT, [s(41), s(42)][tb], offset=(j % 4) * 1024)
    for j in range(K4_R - 1):
        wdma(j)
    for j in range(3):
        aload(j)
    ACC = [[v(64 + 32 * tb + 16 * nb, 16) for nb in range(2)] for tb in range(2)]
    for tb in range(2):
        for nb in range(2):
            for j in range(16):
                k.valu('v_mov_b32', ACC[tb][nb][j], 0)
    WF = [[v(48 + 8 * buf + 4 * nb, 4) for nb in range(2)] for buf in range(2)]

    def wreads(j):
        slot = j % K4_R
        out = []
        for nb in range(2):
            for t in range(2):
                out.append(lambda nb=nb, t=t, slot=slot, j=j:
                           k.ds_read(WF[j & 1][nb].sub(2 * t, 2), vtr, slot * 2048 + nb * 1024 + t * 512, tr=True))
        return out
    k.wait_tag(('w', 0))
    for th in wreads(0):
        th()
    for j in range(28):
        mains = [lambda tb=tb, nb=nb, j=j: k.mfma(ACC[tb][nb], WF[j & 1][nb], AFR[j % 4][tb], ACC[tb][nb])
                 for tb in range(2) for nb in range(2)]
        fillers = []
        if j + 1 < 28:
            fillers.append(lambda j=j: k.wait_tag(('w', j + 1)))
            fillers += wreads(j + 1)
        if j + 3 < 28:
            fillers.append(lambda j=j: aload(j + 3))
        if j + K4_R - 1 < 28:
            fillers.append(lambda j=j: wdma(j + K4_R - 1))
        interleave(k, mains, fillers)
    k.wait_all()
    k.barrier()
    vrw = v(6)
    k.valu('v_add_u32', vrw, sring, vl16)
    blocks = [(tb, nb) for tb in range(2) for nb in range(2)]
    for bi, (tb, nb) in enumerate(blocks):
        for q in range(4):
            k.ds_write(vrw, ACC[tb][nb].sub(4 * q, 4), bi * 4096 + q * 1024)
    k.wait_lgkm(0)
    k.barrier()
    FIN = v(128, 16)
    PRT = [v(144 + 16 * i, 16) for i in range(3)]
    vro = v(7)
    k.valu('v_lshlrev_b32', t0, 12, wvv)
    k.valu('v_add_u32', vro, t0, vl16)
    for i in range(1, 4):
        k.valu('v_add_u32', t1, i, wvv)
        k.valu('v_and_b32', t1, 3, t1)
        k.valu('v_mul_u32_u24', t1, K4_R * 2048, t1)
        k.valu('v_add_u32', v(10 + i), t1, vro)
        for q in range(4):
            k.ds_read(PRT[i - 1].sub(4 * q, 4), v(10 + i), q * 1024)
    own = v(192, 16)
    k.valu('v_add_u32', v(14), sring, vro)
    for q in range(4):
        k.ds_read(own.sub(4 * q, 4), v(14), q * 1024)
    for j in range(16):
        k.valu('v_add_f32', FIN[j], own[j], PRT[0][j])
    for i in (1, 2):
        for j in range(16):
            k.valu('v_add_f32', FIN[j], FIN[j], PRT[i][j])
    sh = s(43)
    k.salu('s_lshr_b32', st, sw, 1)
    k.salu('s_lshl_b32', sh, mblk, 1)
    k.salu('s_add_u32', sh, sh, st)
    k.salu('s_lshl_b32', st2, sh, 15)
    k.salu('s_lshl_b32', sh, sh, 5)
    k.salu('s_lshl_b32', st, nblk, 2)
    k.salu('s_add_u32', sh, sh, st)
    k.salu('s_and_b32', st, sw, 1)
    k.salu('s_lshl_b32', st, st, 1)
    k.salu('s_add_u32', sh, sh, st)
    k.salu('s_lshl_b32', sh, sh, 10)
    HFR = v(208, 8)
    k.bload(HFR.sub(0, 4), vl16, sHF, sh)
    k.bload(HFR.sub(4, 4), vl16, sHF, sh, offset=1024)
    AP = v(216, 8)
    for i in range(8):
        k.valu('v_cvt_pk_bf16_f32', AP[i], FIN[2 * i], FIN[2 * i + 1])
    XA, XB = v(144, 16), v(160, 16)
    for i in range(8):
        unpack_lo(k, XA[2 * i], AP[i])
        unpack_hi(k, XA[2 * i + 1], AP[i])
        unpack_lo(k, XB[2 * i], HFR[i])
        unpack_hi(k, XB[2 * i + 1], HFR[i])
    for j in range(16):
        k.valu('v_add_f32', XA[j], XA[j], XB[j])
    OP = v(176, 8)
    for i in range(8):
        k.valu('v_cvt_pk_bf16_f32', OP[i], XA[2 * i], XA[2 * i + 1])
    vo = v(10)
    k.valu('v_and_b32', t0, 31, lane)
    k.valu('v_lshlrev_b32', vo, 10, t0)
    k.valu('v_lshrrev_b32', t1, 5, lane)
    k.valu('v_lshl_add_u32', vo, t1, 3, vo)
    k.salu('s_lshl_b32', st, nblk, 7)
    k.salu('s_add_u32', st2, st2, st)
    k.salu('s_and_b32', st, sw, 1)
    k.salu('s_lshl_b32', st, st, 6)
    k.salu('s_add_u32', st2, st2, st)
    for i in range(4):
        k.bstore(OP.sub(2 * i, 2), vo, sOUT, st2, offset=16 * i)
    kernel_tail(k)
    return k, 256, 256, K4_LDS


def build(kernels, out_path):
    hdr = open('sequential_preLN__linear_kernel_hedgehog__swiglu_ffn__prompt.s.ref').read()
    head_lines = []
    for ln in hdr.splitlines():
        if ln.startswith(';') and '@launch' not in ln:
            head_lines.append(ln)
        elif ln.startswith(';'):
            continue
        else:
            break
    txt = '\n'.join(head_lines) + '\n'
    for k, grid, block, lds in kernels:
        txt += f'; @launch kernel={k.name} grid=({grid},1,1) block=({block},1,1) lds={lds}\n'
    txt += '.amdgcn_target "amdgcn-amd-amdhsa--gfx950"\n.text\n'
    for k, *_ in kernels:
        txt += k.text()
    txt += '.section .rodata,"a"\n.p2align 6\n'
    for k, *_ in kernels:
        txt += kd_block(k)
    open(out_path, 'w').write(txt)
    for k, grid, block, lds in kernels:
        print(f'{k.name}: {k.pos} slots, vgpr {k.maxv + 1}, agpr {k.maxa + 1}, sgpr {k.maxs + 1}, lds {lds}, '
              f'mfma {k.count.get("v_mfma_f32_32x32x16_bf16", 0)}, nop {k.count.get("s_nop", 0)}, waitcnt {k.count.get("s_waitcnt", 0)}')


if __name__ == '__main__':
    out = sys.argv[1] if len(sys.argv) > 1 else 'out.s'
    which = sys.argv[2] if len(sys.argv) > 2 else '01'
    gens = {'0': gen_k0, '1': gen_k1, '2': gen_k2, '3': gen_k3, '4': gen_k4}
    build([gens[c]() for c in which], out)
```
